```python
import torch

def _softmax(x, axis=-1):
    return torch.softmax(x, dim=axis)
def _gelu(x):
    return torch.nn.functional.gelu(x, approximate="tanh")
def _silu(x):
    return torch.nn.functional.silu(x)
def _sigmoid(x):
    return torch.sigmoid(x)
def _layernorm(x, axis=-1, eps=1e-5):
    m = x.mean(dim=axis, keepdim=True)
    v = x.var(dim=axis, keepdim=True, unbiased=False)
    return (x - m) / torch.sqrt(v + eps)
def _scatter_add(tgt, idx, src, axis=0):
    return tgt.clone().index_add_(axis, idx, src)
def _segment_sum(src, seg, n):
    out = torch.zeros((n,) + src.shape[1:], dtype=src.dtype)
    return out.index_add_(0, seg, src)
def _pad(x, pw):
    flat = tuple(v for pair in reversed(pw) for v in pair)
    return torch.nn.functional.pad(x, flat)

kernel_name = 'sequential_preLN__sliding_local_dilated__glu_gated_glu__prompt'

def setup_inputs():

    _w = (lambda a: (lambda t: t.to(torch.bfloat16) if t.is_floating_point() else t)(torch.as_tensor(a)))
    def _A_setup():
        B, S, D = 1, 2048, 576
        return {
            "x": _w((lambda *s: torch.randn(*s, dtype=torch.bfloat16) * 0.05)(B, S, D)),
            "wqkv": _w((lambda *s: torch.randn(*s, dtype=torch.bfloat16) * 0.05)(D, 3 * D)),
            "wo": _w((lambda *s: torch.randn(*s, dtype=torch.bfloat16) * 0.05)(D, D)),
        }
    _A_in = _A_setup()

    def _B_setup():
        B, S, D, F = 1, 2048, 576, 4608
        return {
            "x": _w((lambda *s: torch.randn(*s, dtype=torch.bfloat16) * 0.05)(B, S, D)),
            "w_gate": _w((lambda *s: torch.randn(*s, dtype=torch.bfloat16) * 0.05)(D, F)),
            "w_up": _w((lambda *s: torch.randn(*s, dtype=torch.bfloat16) * 0.05)(D, F)),
            "w_down": _w((lambda *s: torch.randn(*s, dtype=torch.bfloat16) * 0.05)(F, D)),
        }
    _B_in = _B_setup()

    return {
        "A_x": _A_in["x"],
        "A_wqkv": _A_in["wqkv"],
        "A_wo": _A_in["wo"],
        "B_x": _B_in["x"],
        "B_w_gate": _B_in["w_gate"],
        "B_w_up": _B_in["w_up"],
        "B_w_down": _B_in["w_down"],
    }

def reference(A_x, A_wqkv, A_wo, B_x, B_w_gate, B_w_up, B_w_down):
    def _A_ref(x, wqkv, wo):
        B, S, D = x.shape
        H = 32; Dh = D // H
        W, dil = 8, 2
        qkv = (lambda x, *d: x.permute(*d))((x @ wqkv).reshape(B, S, 3, H, Dh), 2, 0, 3, 1, 4)
        q, k, v = qkv[0], qkv[1], qkv[2]
        scale = Dh ** -0.5
        pos = torch.arange(S)
        off = torch.arange(W) * dil
        idx = pos[:, None] - off[None, :]
        mask = idx >= 0
        idx_c = torch.where(mask, idx, 0).reshape(-1)
        kg = k[:, :, idx_c, :].reshape(B, H, S, W, Dh)
        vg = v[:, :, idx_c, :].reshape(B, H, S, W, Dh)
        logits = torch.einsum("bhsd,bhswd->bhsw", q, kg) * scale
        logits = torch.where(mask[None, None, :, :], logits, -1e9)
        attn = _softmax(logits, axis=-1)
        o = torch.einsum("bhsw,bhswd->bhsd", attn, vg)
        return (lambda x, *d: x.permute(*d))(o, 0, 2, 1, 3).reshape(B, S, D) @ wo

    def _B_ref(x, w_gate, w_up, w_down):
        g = torch.einsum("bsd,df->bsf", x, w_gate)
        u = torch.einsum("bsd,df->bsf", x, w_up)
        h = _sigmoid(g) * u
        return torch.einsum("bsf,fd->bsd", h, w_down)

    x = A_x
    h = x + _A_ref(_layernorm(x, axis=-1), A_wqkv, A_wo)
    h2 = h + _B_ref(_layernorm(h, axis=-1), B_w_gate, B_w_up, B_w_down)
    return h2
```

```python
import re

REG_RE = re.compile(r'^(-?)(?:abs\()?([vas])(?:(\d+)|\[(\d+):(\d+)\])\)?$')

TRANS = ('v_exp_f32', 'v_log_f32', 'v_rcp_f32', 'v_rsq_f32', 'v_sqrt_f32', 'v_sin_f32', 'v_cos_f32',
         'v_rcp_iflag_f32')


def parse_reg(tok):
    tok = tok.strip()
    if tok.startswith('|') and tok.endswith('|'):
        tok = tok[1:-1]
    if tok.startswith('-|') and tok.endswith('|'):
        tok = tok[2:-1]
    if tok == 'vcc':
        return [('s', 106), ('s', 107)]
    if tok == 'exec':
        return [('s', 126), ('s', 127)]
    if tok == 'm0':
        return [('s', 124)]
    m = REG_RE.match(tok)
    if not m:
        return []
    k = m.group(2)
    if m.group(3) is not None:
        return [(k, int(m.group(3)))]
    return [(k, i) for i in range(int(m.group(4)), int(m.group(5)) + 1)]


def split_ops(s):
    out, depth, cur = [], 0, ''
    for ch in s:
        if ch in '[(':
            depth += 1
        if ch in '])':
            depth -= 1
        if ch == ',' and depth == 0:
            out.append(cur.strip())
            cur = ''
        else:
            cur += ch
    if cur.strip():
        out.append(cur.strip())
    mods = []
    if out:
        parts = out[-1].split()
        out[-1] = parts[0]
        mods = parts[1:]
    return out, mods


class Ins:
    __slots__ = ('text', 'mn', 'ops', 'mods', 'cls', 'rd', 'wr', 'passes', 'cregs', 'abregs', 'is_label', 'dpp', 'nops')

    def __init__(self, text):
        self.text = text
        t = text.split(';')[0].strip()
        self.is_label = t.endswith(':')
        self.rd, self.wr = set(), set()
        self.cls = 'other'
        self.passes = 0
        self.cregs = []
        self.abregs = set()
        self.dpp = False
        self.nops = 1
        if self.is_label or not t or t.startswith('.'):
            self.mn = ''
            self.ops, self.mods = [], []
            self.nops = 0
            self.cls = 'label' if self.is_label else 'none'
            return
        sp = t.split(None, 1)
        self.mn = mn = sp[0]
        ops, mods = split_ops(sp[1]) if len(sp) > 1 else ([], [])
        self.ops, self.mods = ops, mods
        R = [parse_reg(o) for o in ops]
        base = mn
        for suf in ('_e32', '_e64', '_dpp', '_sdwa'):
            if base.endswith(suf):
                base = base[:-len(suf)]
        if mn.endswith('_dpp') or any(m.startswith(('row_', 'quad_perm', 'wave_')) for m in mods):
            self.dpp = True
        if mn == 's_nop':
            self.nops = int(ops[0], 0) + 1
            self.cls = 'nop'
        elif mn.startswith('v_mfma'):
            self.cls = 'mfma'
            self.passes = 8 if '32x32x16' in mn else (4 if '16x16x32' in mn else None)
            assert self.passes, mn
            self.wr = set(R[0])
            self.abregs = set(R[1]) | set(R[2])
            self.cregs = R[3]
            self.rd = self.abregs | set(R[3])
        elif mn.startswith('v_'):
            self.cls = 'trans' if base in TRANS else ('dot' if base.startswith('v_dot') else 'valu')
            if base.startswith('v_cmp'):
                self.wr = set(R[0])
                for r in R[1:]:
                    self.rd |= set(r)
            elif base.startswith(('v_permlane', 'v_swap')):
                self.wr = set(R[0]) | set(R[1])
                self.rd = set(R[0]) | set(R[1])
            elif base in ('v_add_co_u32', 'v_sub_co_u32', 'v_addc_co_u32', 'v_subb_co_u32', 'v_subrev_co_u32',
                          'v_mad_u64_u32', 'v_div_scale_f32'):
                self.wr = set(R[0]) | set(R[1])
                for r in R[2:]:
                    self.rd |= set(r)
            else:
                self.wr = set(R[0])
                for r in R[1:]:
                    self.rd |= set(r)
                if base.startswith(('v_fmac', 'v_dot2c', 'v_pk_fmac', 'v_mac', 'v_writelane')) or self.dpp:
                    self.rd |= set(R[0])
                if base == 'v_cndmask_b32' and len(ops) == 3:
                    self.rd |= set(parse_reg('vcc'))
        elif mn.startswith('ds_'):
            if mn.startswith(('ds_read', 'ds_bpermute', 'ds_permute', 'ds_swizzle')):
                self.cls = 'ds_read'
                self.wr = set(R[0])
                for r in R[1:]:
                    self.rd |= set(r)
            else:
                self.cls = 'ds_write'
                for r in R:
                    self.rd |= set(r)
        elif mn.startswith('buffer_load') or mn.startswith('global_load'):
            if 'lds' in mods or '_lds_' in mn:
                self.cls = 'dma'
                for r in R:
                    self.rd |= set(r)
                self.rd |= set(parse_reg('m0'))
            else:
                self.cls = 'vload'
                self.wr = set(R[0])
                for r in R[1:]:
                    self.rd |= set(r)
        elif mn.startswith(('buffer_store', 'global_store', 'buffer_atomic', 'global_atomic')):
            self.cls = 'vstore'
            for r in R:
                self.rd |= set(r)
        elif mn.startswith('s_'):
            self.cls = 'salu'
            if mn.startswith(('s_cmp', 's_cbranch', 's_branch', 's_waitcnt', 's_barrier', 's_endpgm', 's_setprio',
                              's_sleep', 's_bitcmp')):
                for r in R:
                    self.rd |= set(r)
            else:
                if R:
                    self.wr = set(R[0])
                for r in R[1:]:
                    self.rd |= set(r)
                if 'saveexec' in mn:
                    self.wr |= set(parse_reg('exec'))

    def store_data(self):
        if self.cls != 'vstore' or not (self.mn.endswith('x4') or self.mn.endswith('x3')):
            return set()
        idx = 0 if self.mn.startswith('buffer') else 1
        return set(parse_reg(self.ops[idx]))


def vregs(s):
    return {r for r in s if r[0] in 'va'}


def sregs(s):
    return {r for r in s if r[0] == 's'}


def need(p, c):
    n = 0
    pv = p.cls in ('valu', 'trans', 'dot')
    cv = c.cls in ('valu', 'trans', 'dot')
    if pv:
        w = vregs(p.wr)
        if c.cls == 'mfma' and (w & c.rd):
            n = max(n, 2 if p.cls != 'dot' else 3)
        if p.cls == 'trans' and cv and c.cls != 'trans' and (w & c.rd):
            n = max(n, 1)
        if p.cls == 'trans' and c.cls in ('vstore', 'ds_write', 'mfma') and (w & c.rd):
            n = max(n, 1)
        if p.cls == 'dot':
            if (w & (c.rd | c.wr)):
                if c.mn == p.mn and not (w & (set(parse_reg(c.ops[1])) | set(parse_reg(c.ops[2])))):
                    pass
                else:
                    n = max(n, 3)
        if cv and c.dpp and (w & c.rd):
            n = max(n, 2)
        if c.mn.startswith('v_permlane') and (w & c.rd):
            n = max(n, 2)
        if c.mn.startswith(('v_readfirstlane', 'v_readlane')) and (w & c.rd):
            n = max(n, 1)
        ws = sregs(p.wr)
        if ws:
            if cv and (ws & c.rd):
                n = max(n, 4 if c.mn.startswith(('v_readlane', 'v_writelane')) else 2)
            if c.cls in ('vload', 'vstore', 'dma') and (ws & c.rd):
                n = max(n, 5)
            if c.cls == 'salu' and (ws & c.rd):
                n = max(n, 1)
    if p.cls == 'mfma':
        big = {4: 8, 8: 12}[p.passes]
        ov = {4: 6, 8: 10}[p.passes]
        if c.cls == 'mfma':
            if p.wr & c.abregs:
                n = max(n, big)
            if p.wr & set(c.cregs):
                if set(c.cregs) == p.wr and c.passes == p.passes:
                    pass
                else:
                    n = max(n, ov)
            elif p.wr & c.wr:
                n = max(n, big)
        elif cv:
            if p.wr & (c.rd | c.wr):
                n = max(n, big)
            if set(p.cregs) & c.wr:
                n = max(n, {4: 3, 8: 7}[p.passes])
        elif c.cls in ('vload', 'vstore', 'ds_read', 'ds_write', 'dma'):
            if p.wr & (c.rd | c.wr):
                n = max(n, big)
            if set(p.cregs) & c.wr:
                n = max(n, {4: 3, 8: 7}[p.passes])
    if p.cls == 'salu' and ('s', 124) in p.wr and c.cls == 'dma':
        n = max(n, 1)
    sd = p.store_data()
    if sd and (sd & c.wr):
        n = max(n, 2 if cv else 1)
    return n


MAXH = 14


def pad(instrs, hist=None):
    out = list(hist or [])
    nh = len(out)
    for ins in instrs:
        if ins.cls in ('label', 'none'):
            out.append(ins)
            continue
        dist = 0
        req = 0
        j = len(out) - 1
        while j >= 0 and dist < MAXH:
            p = out[j]
            if p.cls not in ('label', 'none', 'nop'):
                nn = need(p, ins)
                if nn > dist:
                    req = max(req, nn - dist)
            dist += p.nops
            j -= 1
        while req > 0:
            k = min(req, 16)
            out.append(Ins('    s_nop %d' % (k - 1)))
            req -= k
        out.append(ins)
    return out[nh:]


class Kern:
    def __init__(self, name):
        self.name = name
        self.ins = []
        self.loops = []
        self.nv = 0
        self.ns = 0
        self.na = 0

    def __call__(self, text):
        for line in text.strip('\n').split('\n'):
            line = line.strip()
            if not line:
                continue
            self.ins.append(Ins(('' if line.endswith(':') else '    ') + line))

    def add(self, ins_list):
        self.ins.extend(ins_list)

    def label(self, l):
        self.ins.append(Ins(l + ':'))

    def finalize(self):
        out = pad(self.ins)
        changed = True
        while changed:
            changed = False
            labels = {i.text.strip()[:-1]: n for n, i in enumerate(out) if i.is_label}
            for n, i in enumerate(out):
                if i.mn.startswith(('s_cbranch', 's_branch')):
                    tgt = i.ops[0]
                    if tgt in labels:
                        h = labels[tgt]
                        hist = out[max(0, n - 30):n + 1]
                        head = out[h:h + 30]
                        fixed = pad(head, hist)
                        extra = sum(x.nops for x in fixed) - sum(x.nops for x in head)
                        if extra > 0:
                            out.insert(n, Ins('    s_nop %d' % (min(extra, 16) - 1)))
                            changed = True
                            break
        self.out = out
        mv = ma = ms = -1
        for i in out:
            for (k, x) in (i.rd | i.wr):
                if k == 'v':
                    mv = max(mv, x)
                elif k == 'a':
                    ma = max(ma, x)
                elif k == 's' and x < 102:
                    ms = max(ms, x)
        self.mv, self.ma, self.ms = mv, ma, ms
        return out

    def text(self, extra_desc=''):
        out = self.finalize()
        acc_off = max(4, ((self.mv + 1 + 3) // 4) * 4)
        if self.ma >= 0:
            nfv = acc_off + self.ma + 1
        else:
            nfv = self.mv + 1
        assert acc_off <= 256 and nfv <= 512, (acc_off, nfv)
        s = ['.text', '.globl %s' % self.name, '.p2align 8', '.type %s,@function' % self.name, '%s:' % self.name]
        s += [i.text for i in out]
        s += ['.section .rodata,"a"', '.p2align 6', '.amdhsa_kernel %s' % self.name,
              '  .amdhsa_next_free_vgpr %d' % nfv,
              '  .amdhsa_next_free_sgpr %d' % max(self.ms + 1, 16),
              '  .amdhsa_accum_offset %d' % acc_off,
              '  .amdhsa_group_segment_fixed_size 0',
              '  .amdhsa_kernarg_size 80',
              '  .amdhsa_user_sgpr_count 2',
              '  .amdhsa_user_sgpr_kernarg_segment_ptr 1',
              '  .amdhsa_system_sgpr_workgroup_id_x 1',
              '  .amdhsa_float_denorm_mode_32 3',
              '  .amdhsa_float_denorm_mode_16_64 3']
        if extra_desc:
            s.append(extra_desc)
        s += ['.end_amdhsa_kernel', '']
        return '\n'.join(s)


def vr(b, n=1):
    return 'v%d' % b if n == 1 else 'v[%d:%d]' % (b, b + n - 1)


def ar(b, n=1):
    return 'a%d' % b if n == 1 else 'a[%d:%d]' % (b, b + n - 1)


def sr(b, n=1):
    return 's%d' % b if n == 1 else 's[%d:%d]' % (b, b + n - 1)


def build_file(header_comments, launches, kernels):
    s = []
    for c in header_comments:
        s.append('; ' + c)
    for (k, g, b, lds) in launches:
        s.append('; @launch kernel=%s grid=(%d,1,1) block=(%d,1,1) lds=%d' % (k, g, b, lds))
    s.append('.amdgcn_target "amdgcn-amd-amdhsa--gfx950"')
    for k in kernels:
        s.append(k)
    return '\n'.join(s) + '\n'


class TK(Kern):
    def __init__(self, name):
        super().__init__(name)
        self.vm_issued = 0
        self.vm_done = 0
        self.lg_issued = 0
        self.lg_done = 0

    def vm(self, text):
        self(text)
        self.vm_issued += 1
        assert self.vm_issued - self.vm_done <= 63, 'too many outstanding vmem'
        return self.vm_issued - 1

    def lg(self, text):
        self(text)
        self.lg_issued += 1
        return self.lg_issued - 1

    def wait(self, vm=None, lg=None):
        parts = []
        if vm is not None and vm >= self.vm_done:
            n = self.vm_issued - 1 - vm
            parts.append('vmcnt(%d)' % n)
            self.vm_done = vm + 1
        if lg is not None and lg >= self.lg_done:
            n = self.lg_issued - 1 - lg
            if n > 15:
                n = 15
                n = 0 if False else n
            parts.append('lgkmcnt(%d)' % min(n, 15))
            assert self.lg_issued - 1 - lg <= 15, 'lgkm distance too large'
            self.lg_done = lg + 1
        if parts:
            self('s_waitcnt ' + ' '.join(parts))

    def wait_all(self, vm=True, lg=True):
        parts = []
        if vm:
            parts.append('vmcnt(0)')
            self.vm_done = self.vm_issued
        if lg:
            parts.append('lgkmcnt(0)')
            self.lg_done = self.lg_issued
        self('s_waitcnt ' + ' '.join(parts))

    def srd(self, d, base_lo, base_hi, nbytes, add=None):
        if add is None:
            self('s_mov_b32 s%d, s%d' % (d, base_lo))
            self('s_mov_b32 s%d, s%d' % (d + 1, base_hi))
        else:
            self('s_add_u32 s%d, s%d, %s' % (d, base_lo, add))
            self('s_addc_u32 s%d, s%d, 0' % (d + 1, base_hi))
        self('s_mov_b32 s%d, %s' % (d + 2, nbytes))
        self('s_mov_b32 s%d, 0x20000' % (d + 3))
```

```python
from asmgen import *
from layout import *
import struct

LOG2E = 1.4426950408889634


def f32bits(x):
    return struct.unpack('<I', struct.pack('<f', x))[0]


def fh(x):
    return hex(f32bits(x))


def stamp_start(k):
    k('s_memrealtime s[60:61]')
    k('s_memtime s[72:73]')


def emit_stamp(k, VT, off, s_wave=30, s_ws=4):
    k('s_mov_b64 exec, -1')
    k('s_memtime s[76:77]')
    k('s_waitcnt vmcnt(0)')
    k('s_memrealtime s[62:63]')
    k('s_memtime s[74:75]')
    k('s_waitcnt lgkmcnt(0)')
    k.srd(64, s_ws, s_ws + 1, 0x10000, str(off))
    for i in range(4):
        k('v_mov_b32 v%d, s%d' % (VT + 4 + i, 60 + i))
    k('s_lshl_b32 s68, s2, 2')
    k('s_add_u32 s68, s68, s%d' % s_wave)
    k('s_lshl_b32 s68, s68, 5')
    k('v_mov_b32 v%d, s68' % (VT + 2))
    k('v_cmp_eq_u32 vcc, 0, v%d' % VT)
    k('s_and_saveexec_b64 s[70:71], vcc')
    k('buffer_store_dwordx4 %s, v%d, s[64:67], 0 offen' % (vr(VT + 4, 4), VT + 2))
    k('s_sub_u32 s74, s74, s72')
    k('s_sub_u32 s76, s76, s72')
    k('v_mov_b32 v%d, s74' % (VT + 8))
    k('v_mov_b32 v%d, s76' % (VT + 9))
    k('buffer_store_dwordx2 %s, v%d, s[64:67], 0 offen offset:16' % (vr(VT + 8, 2), VT + 2))


def ln_finalize_list(vs, vq, t0, v_negm, v_out, mul=None):
    L = []
    L.append('v_mul_f32 v%d, %s, v%d' % (vs, fh(1.0 / 576), vs))
    L.append('v_mul_f32 v%d, %s, v%d' % (vq, fh(1.0 / 576), vq))
    L.append('v_fma_f32 v%d, -v%d, v%d, v%d' % (vq, vs, vs, vq))
    L.append('v_max_f32 v%d, 0, v%d' % (vq, vq))
    L.append('v_cvt_pk_bf16_f32 v%d, v%d, v%d' % (t0, vs, vq))
    L.append('v_lshlrev_b32 v%d, 16, v%d' % (vs, t0))
    L.append('v_and_b32 v%d, 0xffff0000, v%d' % (vq, t0))
    L.append('v_sub_f32 v%d, 0, v%d' % (v_negm, vs))
    L.append('v_add_f32 v%d, %s, v%d' % (vq, fh(1e-5), vq))
    L.append('v_cvt_pk_bf16_f32 v%d, v%d, v%d' % (vq, vq, vq))
    L.append('v_lshlrev_b32 v%d, 16, v%d' % (vq, vq))
    L.append('v_sqrt_f32 v%d, v%d' % (vq, vq))
    L.append('v_cvt_pk_bf16_f32 v%d, v%d, v%d' % (vq, vq, vq))
    L.append('v_lshlrev_b32 v%d, 16, v%d' % (vq, vq))
    if mul is None:
        L.append('v_rcp_f32 v%d, v%d' % (v_out, vq))
    else:
        L.append('v_rcp_f32 v%d, v%d' % (vq, vq))
        L.append('v_mul_f32 v%d, %s, v%d' % (v_out, fh(mul), vq))
    return L


def group_reduce_list(a, b, c, d):
    return ['v_mov_b32 v%d, v%d' % (c, a), 'v_mov_b32 v%d, v%d' % (d, b),
            's_nop 0',
            'v_permlane16_swap_b32 v%d, v%d' % (a, c), 'v_permlane16_swap_b32 v%d, v%d' % (b, d),
            'v_add_f32 v%d, v%d, v%d' % (a, a, c), 'v_add_f32 v%d, v%d, v%d' % (b, b, d),
            'v_mov_b32 v%d, v%d' % (c, a), 'v_mov_b32 v%d, v%d' % (d, b),
            's_nop 0',
            'v_permlane32_swap_b32 v%d, v%d' % (a, c), 'v_permlane32_swap_b32 v%d, v%d' % (b, d),
            'v_add_f32 v%d, v%d, v%d' % (a, a, c), 'v_add_f32 v%d, v%d, v%d' % (b, b, d)]


def stats_reduce_list(v4):
    a, b, c, d = v4, v4 + 1, v4 + 2, v4 + 3
    return ['v_add_f32 v%d, v%d, v%d' % (a, a, c), 'v_add_f32 v%d, v%d, v%d' % (b, b, d)] + group_reduce_list(a, b, c, d)


def emit_marks(k, n, VT, s_ws=4):
    k.srd(64, s_ws, s_ws + 1, 0x20000, str(WS_TS + 0x40000))
    k('s_lshl_b32 s68, s68, 1')
    k('v_mov_b32 v%d, s68' % (VT + 2))
    for i in range(n):
        k('s_sub_u32 s%d, s%d, s72' % (80 + 2 * i, 80 + 2 * i))
        k('v_mov_b32 v%d, s%d' % (i, 80 + 2 * i))
    for q in range((n + 3) // 4):
        k('buffer_store_dwordx4 %s, v%d, s[64:67], 0 offen offset:%d' % (vr(4 * q, 4), VT + 2, 16 * q))
```

```python
from common import *
from k_pack import *

K1_WR = 0
K1_XR = 49152
K1_STAT = 79872
K1_LDS = 80896
K1_QP = 592
K1_OB = 49152
K1_OP = 176


def k1_main(k, L, marks=None):
    def mark():
        if marks is not None:
            k('s_memtime s[%d:%d]' % (80 + 2 * len(marks), 81 + 2 * len(marks)))
            marks.append(1)
    k('s_load_dwordx2 s[4:5], s[0:1], 72')
    k('s_load_dwordx4 s[8:11], s[0:1], 0')
    k('''
    s_and_b32 s28, s2, 7
    s_lshl_b32 s28, s28, 2
    s_bfe_u32 s29, s2, 0x20003
    s_add_u32 s28, s28, s29
    s_lshr_b32 s29, s2, 5
    ''')
    ACC = 0
    BF = 80
    AF = 120
    ST = 152
    XA = 160
    WA = 170
    DX = 174
    DW = 177
    VT = 180
    VONE = 196
    LANE, WV, G, J = VT, VT + 1, VT + 2, VT + 3
    T0, T1, T2, T3 = VT + 4, VT + 5, VT + 6, VT + 7
    k('v_and_b32 v%d, 63, v0' % LANE)
    k('v_lshrrev_b32 v%d, 6, v0' % WV)
    k('v_readfirstlane_b32 s30, v%d' % WV)
    k('v_lshrrev_b32 v%d, 4, v%d' % (G, LANE))
    k('v_and_b32 v%d, 15, v%d' % (J, LANE))
    k('s_lshl_b32 s31, s28, 6')
    k('v_lshrrev_b32 v%d, 5, v%d' % (T0, LANE))
    k('v_lshl_add_u32 v%d, v%d, 1, v%d' % (T1, WV, T0))
    k('v_bfe_u32 v%d, v%d, 1, 4' % (T2, LANE))
    k('v_xor_b32 v%d, v%d, v%d' % (T2, T2, T1))
    k('v_and_b32 v%d, 1, v%d' % (T3, LANE))
    k('v_lshl_add_u32 v%d, v%d, 1, v%d' % (T2, T2, T3))
    k('v_min_u32 v%d, 26, v%d' % (T2, T2))
    k('v_mul_u32_u24 v%d, 57, v%d' % (T3, T2))
    k('v_lshrrev_b32 v%d, 9, v%d' % (T3, T3))
    k('v_mul_u32_u24 v%d, %d, v%d' % (DW, 1152 - 144, T3))
    k('v_lshl_add_u32 v%d, v%d, 4, v%d' % (DW, T2, DW))
    k('v_and_b32 v%d, 1, v%d' % (T2, WV))
    k('v_lshl_add_u32 v%d, v%d, 1, v%d' % (T0, T2, T0))
    k('v_lshrrev_b32 v%d, 1, v%d' % (T2, WV))
    k('v_lshl_add_u32 v%d, v%d, 3, v%d' % (T0, T2, T0))
    k('v_mul_u32_u24 v%d, 3456, v%d' % (T0, T0))
    k('v_add_u32 v%d, v%d, v%d' % (DW, DW, T0))
    k('s_mul_i32 s32, s29, 144')
    k('v_add_u32 v%d, s32, v%d' % (DW, DW))
    k('s_and_b32 s33, s30, 1')
    k('s_lshl_b32 s33, s33, 10')
    k('s_lshr_b32 s34, s30, 1')
    k('s_lshl_b32 s34, s34, 12')
    k('s_add_u32 s33, s33, s34')
    k('v_lshrrev_b32 v%d, 3, v%d' % (T0, LANE))
    k('v_and_b32 v%d, 7, v%d' % (T1, LANE))
    k('v_xor_b32 v%d, v%d, v%d' % (T1, T1, T0))
    k('v_lshlrev_b32 v%d, 4, v%d' % (T1, T1))
    k('s_lshl_b32 s34, s30, 3')
    k('s_add_u32 s34, s34, s31')
    k('v_add_u32 v%d, s34, v%d' % (T2, T0))
    k('v_mul_u32_u24 v%d, 1152, v%d' % (T2, T2))
    k('v_add_u32 v%d, v%d, v%d' % (DX, T2, T1))
    k('v_add_u32 v%d, %d, v%d' % (DX + 1, 32 * 1152, DX))
    k('s_and_b32 s34, s30, 1')
    k('s_lshl_b32 s34, s34, 3')
    k('s_add_u32 s34, s34, s31')
    k('s_sub_u32 s34, s34, 16')
    k('v_add_u32 v%d, s34, v%d' % (T2, T0))
    k('s_movk_i32 s35, 1152')
    k('v_mul_lo_u32 v%d, v%d, s35' % (T2, T2))
    k('v_add_u32 v%d, v%d, v%d' % (DX + 2, T2, T1))
    k('s_lshl_b32 s34, s30, 10')
    k('s_and_b32 s35, s30, 1')
    k('s_lshl_b32 s35, s35, 10')
    k('s_waitcnt lgkmcnt(0)')
    k.srd(12, 8, 9, S * D_BYTES)
    k.srd(16, 10, 11, D * 3456)
    ids = {}

    def dma_w(ks):
        Lq = []
        for i in range(4):
            ro = 4 * (i & 1) + 16 * (i >> 1)
            Lq.append(('s', 's_add_u32 m0, s33, %d' % (K1_WR + (ks % 3) * 16384 + ro * 512)))
            Lq.append(('s', 's_mov_b32 s40, %d' % ((32 * ks + ro) * 3456)))
            Lq.append(('vm', 'buffer_load_dwordx4 v%d, s[16:19], s40 offen lds' % DW, ('w', ks)))
        return Lq

    def dma_x(q):
        Lq = [('s', 's_mov_b32 s41, %d' % (q * 128))]
        base = K1_XR + (q % 3) * 10240
        for i in range(3):
            if i < 2:
                Lq.append(('s', 's_add_u32 m0, s34, %d' % (base + i * 4096)))
            else:
                Lq.append(('s', 's_add_u32 m0, s35, %d' % (base + 8192)))
            Lq.append(('s', 's_nop 0'))
            Lq.append(('vm', 'buffer_load_dwordx4 v%d, s[12:15], s41 offen lds' % (DX + i), ('x', q)))
        return Lq

    def emit(it):
        if it[0] in ('s', 'v'):
            k(it[1])
        elif it[0] == 'vm':
            ids[it[2]] = k.vm(it[1])
        elif it[0] == 'lg':
            ids[it[2]] = k.lg(it[1])

    for it in dma_w(0) + dma_x(0) + dma_w(1) + dma_w(2) + dma_x(1):
        emit(it)
    k('v_and_b32 v%d, 7, v%d' % (T0, J))
    k('v_xor_b32 v%d, v%d, v%d' % (T0, T0, G))
    k('v_lshlrev_b32 v%d, 4, v%d' % (T0, T0))
    k('v_lshl_add_u32 v%d, v%d, 7, v%d' % (T0, J, T0))
    k('v_add_u32 v%d, %d, v%d' % (T0, K1_XR, T0))
    for sl in range(5):
        if sl < 4:
            k('v_add_u32 v%d, %d, v%d' % (T1, sl, WV))
            k('v_and_b32 v%d, 3, v%d' % (T1, T1))
            k('v_lshl_add_u32 v%d, v%d, 11, v%d' % (XA + 2 * sl, T1, T0))
        else:
            k('v_add_u32 v%d, 8192, v%d' % (XA + 2 * sl, T0))
        k('v_xor_b32 v%d, 64, v%d' % (XA + 2 * sl + 1, XA + 2 * sl))
    k('v_bfe_u32 v%d, v%d, 2, 2' % (T0, LANE))
    k('v_and_b32 v%d, 1, v%d' % (T1, G))
    k('v_lshl_add_u32 v%d, v%d, 2, v%d' % (T1, T1, T0))
    k('v_lshl_add_u32 v%d, v%d, 3, v%d' % (T0, G, T0))
    k('v_lshlrev_b32 v%d, 9, v%d' % (T0, T0))
    k('v_and_b32 v%d, 3, v%d' % (T2, LANE))
    k('v_lshl_add_u32 v%d, v%d, 3, v%d' % (T0, T2, T0))
    for a in range(4):
        k('v_add_u32 v%d, %d, v%d' % (T2, 4 * a, WV))
        k('v_xor_b32 v%d, v%d, v%d' % (T2, T2, T1))
        k('v_lshl_add_u32 v%d, v%d, 5, v%d' % (WA + a, T2, T0))
    k('v_mov_b32 v%d, 0x3f803f80' % VONE)
    for i in range(4):
        k('v_mov_b32 v%d, 0' % (ST + i))
    k('v_cmp_eq_u32 s[44:45], 0, v%d' % J)
    for it in dma_x(2):
        emit(it)

    def bf(ks, sl):
        return BF + (ks & 1) * 20 + sl * 4

    def af(ks, a):
        return AF + (ks & 1) * 16 + a * 4

    def acc(a, sl):
        return ACC + (a * 5 + sl) * 4

    def reads(ks):
        Lq = []
        xo = ((ks >> 1) % 3) * 10240
        wo = K1_WR + (ks % 3) * 16384
        for sl in range(5):
            Lq.append(('lg', 'ds_read_b128 %s, v%d offset:%d' % (vr(bf(ks, sl), 4), XA + 2 * sl + (ks & 1), xo), ('rd', ks)))
        for a in range(4):
            for j4 in range(2):
                Lq.append(('lg', 'ds_read_b64_tr_b16 %s, v%d offset:%d' % (vr(af(ks, a) + 2 * j4, 2), WA + a, wo + j4 * 2048), ('rd', ks)))
        return Lq

    mark()
    k.wait(vm=ids[('x', 0)])
    k('s_barrier')
    mark()
    for it in reads(0):
        emit(it)
    for ks in range(18):
        fill = []
        if ks + 1 < 18:
            need = max(ids[('w', ks + 1)], ids[('x', (ks + 1) >> 1)])
            k.wait(vm=need, lg=ids[('rd', ks)])
            k('s_barrier')
            fill += reads(ks + 1)
            if ks + 3 < 18:
                fill += dma_w(ks + 3)
            if (ks & 1) and (ks >> 1) + 3 < 9:
                fill += dma_x((ks >> 1) + 3)
        else:
            k.wait(lg=ids[('rd', ks)])
        sv = []
        for q in range(4):
            sv.append(('v', 'v_cndmask_b32 v%d, v%d, v%d, s[44:45]' % (bf(ks, 4) + q, bf(ks, 4) + q, VONE)))
        for q in range(4):
            for (sl, o) in ((0, 0), (4, 2)):
                b = bf(ks, sl) + q
                sv.append(('v', 'v_dot2_f32_bf16 v%d, v%d, v%d, v%d' % (ST + o, b, VONE, ST + o)))
                sv.append(('v', 'v_dot2_f32_bf16 v%d, v%d, v%d, v%d' % (ST + o + 1, b, b, ST + o + 1)))
        fill = sv[:4] + fill + sv[4:]
        for sl in range(5):
            for a in range(4):
                c = '0' if ks == 0 else vr(acc(a, sl), 4)
                k('v_mfma_f32_16x16x32_bf16 %s, %s, %s, %s' % (vr(acc(a, sl), 4), vr(af(ks, a), 4), vr(bf(ks, sl), 4), c))
                for _ in range(3):
                    if fill:
                        emit(fill.pop(0))
        while fill:
            emit(fill.pop(0))
    mark()
    NM = 198
    RS = 203
    for t in group_reduce_list(ST, ST + 1, ST + 4, ST + 5):
        k(t)
    for t in group_reduce_list(ST + 2, ST + 3, ST + 4, ST + 5):
        k(t)
    SP = 208
    for t in ln_finalize_list(ST, ST + 1, ST + 4, SP, SP + 1):
        k(t)
    for t in ln_finalize_list(ST + 2, ST + 3, ST + 5, NM + 4, RS + 4):
        k(t)
    k('v_lshl_add_u32 v%d, v%d, 4, v%d' % (T0, WV, J))
    k('v_lshlrev_b32 v%d, 3, v%d' % (T0, T0))
    k('v_add_u32 v%d, %d, v%d' % (T0, K1_STAT, T0))
    k.lg('ds_write_b64 v%d, %s' % (T0, vr(SP, 2)))
    CS = BF
    for a in range(4):
        for r in range(4):
            k('v_mov_b32_dpp v%d, v%d row_newbcast:0 row_mask:0xf bank_mask:0xf' % (CS + 4 * a + r, acc(a, 4) + r))
    CP = BF + 16
    RB = BF + 24
    for a in range(4):
        for p in range(2):
            d = CP + 2 * a + p
            k('v_lshlrev_b32 v%d, 4, v%d' % (T1, WV))
            k('v_lshl_add_u32 v%d, v%d, 2, v%d' % (T1, G, T1))
            k('v_add_u32 v%d, %d, v%d' % (T1, 64 * a + 2 * p, T1))
            k('v_mul_u32_u24 v%d, 3641, v%d' % (T2, T1))
            k('v_lshrrev_b32 v%d, 16, v%d' % (T2, T2))
            k('v_mul_u32_u24 v%d, 12, v%d' % (T2, T2))
            k('v_lshl_add_u32 v%d, v%d, 1, v%d' % (d, T1, T2))
            if a == 3:
                k('v_min_u32 v%d, 576, v%d' % (d, d))
    for sl in range(5):
        if sl < 4:
            k('v_add_u32 v%d, %d, v%d' % (T1, sl, WV))
            k('v_and_b32 v%d, 3, v%d' % (T1, T1))
            k('v_lshl_add_u32 v%d, v%d, 4, v%d' % (T1, T1, J))
            k('v_add_u32 v%d, 16, v%d' % (T2, T1))
            k('v_mul_u32_u24 v%d, %d, v%d' % (RB + sl, K1_QP, T2))
            if sl:
                k('v_lshlrev_b32 v%d, 3, v%d' % (T1, T1))
                k('v_add_u32 v%d, %d, v%d' % (SP + 2 * sl, K1_STAT, T1))
        else:
            k('v_mul_u32_u24 v%d, %d, v%d' % (RB + sl, K1_QP, J))
    k.wait_all(vm=False)
    k('s_barrier')
    rs = []
    for sl in range(1, 4):
        rs.append(k.lg('ds_read_b64 %s, v%d' % (vr(SP + 2 * sl, 2), SP + 2 * sl)))

    def nm(sl):
        return NM + 4 if sl == 4 else SP + 2 * sl

    def rstd(sl):
        return RS + 4 if sl == 4 else SP + 2 * sl + 1
    order = [0, 4, 1, 2, 3]
    W0 = AF
    n = 0
    for sl in order:
        if sl in (1, 2, 3):
            k.wait(lg=rs[sl - 1]) if (k.lg_issued - 1 - rs[sl - 1]) <= 15 else k.wait_all(vm=False)
        for a in range(4):
            b = acc(a, sl)
            for r in range(4):
                k('v_fmac_f32 v%d, v%d, v%d' % (b + r, nm(sl), CS + 4 * a + r))
            for r in range(4):
                k('v_mul_f32 v%d, v%d, v%d' % (b + r, rstd(sl), b + r))
            for p in range(2):
                tv = W0 + (n % 8) * 2
                n += 1
                k('v_cvt_pk_bf16_f32 v%d, v%d, v%d' % (tv, b + 2 * p, b + 2 * p + 1))
                k('v_add_u32 v%d, v%d, v%d' % (tv + 1, RB + sl, CP + 2 * a + p))
                k.lg('ds_write_b32 v%d, v%d' % (tv + 1, tv))
    k.wait_all(vm=False)
    k('s_barrier')
    mark()
    Q = 0
    KR = 10
    VR = 90
    LG = 170
    A0 = T0
    k('v_add_u32 v%d, 2, v%d' % (T1, LANE))
    k('v_mul_u32_u24 v%d, %d, v%d' % (T1, K1_QP, T1))
    k('v_mul_u32_u24 v%d, 48, v%d' % (T2, WV))
    k('v_add_u32 v%d, v%d, v%d' % (A0, T1, T2))

    def rd_row(dst, off):
        k.lg('ds_read_b128 %s, v%d offset:%d' % (vr(dst, 4), A0, off))
        k.lg('ds_read_b128 %s, v%d offset:%d' % (vr(dst + 4, 4), A0, off + 16))
        return k.lg('ds_read_b32 v%d, v%d offset:%d' % (dst + 8, A0, off + 32))
    rq = rd_row(Q, 14 * K1_QP)
    rk = {}
    for w in range(4):
        rk[w] = rd_row(KR + 10 * w, (14 - 2 * w) * K1_QP + 192)
    k('v_add_u32 v%d, s31, v%d' % (T3, LANE))
    rv = {}
    for w in range(8):
        k.wait(lg=rk[w])
        for i in range(9):
            c = '0' if i == 0 else 'v%d' % (LG + w)
            k('v_dot2_f32_bf16 v%d, v%d, v%d, %s' % (LG + w, Q + i, KR + 10 * w + i, c))
        if w + 4 < 8:
            rk[w + 4] = rd_row(KR + 10 * (w + 4), (14 - 2 * (w + 4)) * K1_QP + 192)
        else:
            rv[w - 4] = rd_row(VR + 10 * (w - 4), (14 - 2 * (w - 4)) * K1_QP + 384)
    P = Q
    scale = 18 ** -0.5
    PK = KR
    for w in range(0, 8, 2):
        k('v_cvt_pk_bf16_f32 v%d, v%d, v%d' % (PK + w // 2, LG + w, LG + w + 1))
    for w in range(0, 8, 2):
        k('v_lshlrev_b32 v%d, 16, v%d' % (LG + w, PK + w // 2))
        k('v_and_b32 v%d, 0xffff0000, v%d' % (LG + w + 1, PK + w // 2))
    for w in range(8):
        k('v_mul_f32 v%d, %s, v%d' % (LG + w, fh(scale), LG + w))
    for w in range(0, 8, 2):
        k('v_cvt_pk_bf16_f32 v%d, v%d, v%d' % (PK + w // 2, LG + w, LG + w + 1))
    for w in range(0, 8, 2):
        k('v_lshlrev_b32 v%d, 16, v%d' % (LG + w, PK + w // 2))
        k('v_and_b32 v%d, 0xffff0000, v%d' % (LG + w + 1, PK + w // 2))
    k('v_mov_b32 v%d, %s' % (PK + 4, fh(-1e9)))
    for w in range(1, 8):
        k('v_cmp_le_u32 vcc, %d, v%d' % (2 * w, T3))
        k('v_cndmask_b32 v%d, v%d, v%d, vcc' % (LG + w, PK + 4, LG + w))
    for w in range(4, 8):
        rv[w] = rd_row(VR + 10 * w, (14 - 2 * w) * K1_QP + 384) if False else None
    M = PK + 5
    k('v_max3_f32 v%d, v%d, v%d, v%d' % (M, LG, LG + 1, LG + 2))
    k('v_max3_f32 v%d, v%d, v%d, v%d' % (M + 1, LG + 3, LG + 4, LG + 5))
    k('v_max3_f32 v%d, v%d, v%d, v%d' % (M, M, LG + 6, LG + 7))
    k('v_max_f32 v%d, v%d, v%d' % (M, M, M + 1))
    for w in range(8):
        k('v_sub_f32 v%d, v%d, v%d' % (LG + w, LG + w, M))
    k.wait(lg=rv[3])
    for w in range(4, 8):
        rv[w] = rd_row(VR + 10 * w, (14 - 2 * w) * K1_QP + 384)
    for w in range(8):
        k('v_mul_f32 v%d, %s, v%d' % (LG + w, fh(LOG2E), LG + w))
    for w in range(8):
        k('v_exp_f32 v%d, v%d' % (LG + w, LG + w))
    k('v_add_f32 v%d, v%d, v%d' % (M, LG, LG + 1))
    k('v_add_f32 v%d, v%d, v%d' % (M + 1, LG + 2, LG + 3))
    k('v_add_f32 v%d, v%d, v%d' % (M + 2, LG + 4, LG + 5))
    k('v_add_f32 v%d, v%d, v%d' % (M + 3, LG + 6, LG + 7))
    k('v_add_f32 v%d, v%d, v%d' % (M, M, M + 1))
    k('v_add_f32 v%d, v%d, v%d' % (M + 2, M + 2, M + 3))
    k('v_add_f32 v%d, v%d, v%d' % (M, M, M + 2))
    k('v_rcp_f32 v%d, v%d' % (M, M))
    for w in range(8):
        k('v_mul_f32 v%d, v%d, v%d' % (LG + w, M, LG + w))
    for w in range(0, 8, 2):
        k('v_cvt_pk_bf16_f32 v%d, v%d, v%d' % (PK + w // 2, LG + w, LG + w + 1))
    k('s_mov_b32 s50, 0x05040100')
    k('s_mov_b32 s51, 0x07060302')
    O = KR + 20
    TP = KR + 40
    for wp in range(4):
        if wp == 2:
            k.wait(lg=rv[7])
        a, b = VR + 10 * (2 * wp), VR + 10 * (2 * wp + 1)
        for i in range(9):
            t = TP + (i % 4) * 2
            k('v_perm_b32 v%d, v%d, v%d, s50' % (t, b + i, a + i))
            k('v_perm_b32 v%d, v%d, v%d, s51' % (t + 1, b + i, a + i))
            c0 = '0' if wp == 0 else 'v%d' % (O + 2 * i)
            c1 = '0' if wp == 0 else 'v%d' % (O + 2 * i + 1)
            k('v_dot2_f32_bf16 v%d, v%d, v%d, %s' % (O + 2 * i, t, PK + wp, c0))
            k('v_dot2_f32_bf16 v%d, v%d, v%d, %s' % (O + 2 * i + 1, t + 1, PK + wp, c1))
    k('v_mul_u32_u24 v%d, %d, v%d' % (T1, K1_OP, LANE))
    k('v_mul_u32_u24 v%d, 36, v%d' % (T2, WV))
    k('v_add_u32 v%d, v%d, v%d' % (T2, T1, T2))
    for i in range(9):
        k('v_cvt_pk_bf16_f32 v%d, v%d, v%d' % (Q + i, O + 2 * i, O + 2 * i + 1))
        k.lg('ds_write_b32 v%d, v%d offset:%d' % (T2, Q + i, K1_OB + 4 * i))
    mark()
    k.srd(20, 4, 5, S * D_BYTES, str(WS_OF))
    k('v_lshlrev_b32 v%d, 10, v%d' % (T3, G))
    k('v_lshl_add_u32 v%d, v%d, 4, v%d' % (T3, J, T3))
    k('v_lshl_add_u32 v%d, v%d, 4, v%d' % (T1, WV, T1))
    k('s_mul_i32 s36, s29, 9')
    k('s_add_u32 s36, s36, s30')
    k('s_mul_i32 s37, s28, 18')
    k.wait_all(vm=False)
    k('s_barrier')
    rr = []
    for r in range(3):
        rr.append(k.lg('ds_read_b128 %s, v%d offset:%d' % (vr(KR + 2 + 4 * r, 4), T1, K1_OB + 64 * r)))
    for r in range(3):
        if r == 2:
            k('s_cmp_lg_u32 s30, 0')
            k('s_cbranch_scc1 L_%s_m_done' % L)
        k('s_add_u32 s38, s36, %d' % (4 * r))
        k('s_lshr_b32 s39, s38, 2')
        k('s_add_u32 s39, s39, s37')
        k('s_lshl_b32 s39, s39, 12')
        k('s_and_b32 s38, s38, 3')
        k('s_lshl_b32 s38, s38, 8')
        k('s_add_u32 s39, s39, s38')
        k.wait(lg=rr[r])
        k.vm('buffer_store_dwordx4 %s, v%d, s[20:23], s39 offen' % (vr(KR + 2 + 4 * r, 4), T3))
    k.label('L_%s_m_done' % L)
    return VT


def gen_k1(name, kinds=('w1', 'wo', 'wd'), stamp=False):
    k = TK(name)
    npk = sum({'w1': N_PACK_W1, 'wo': N_PACK_WO, 'wd': N_PACK_WD}[x] for x in kinds)
    k('s_cmp_ge_u32 s2, %d' % (256 + npk))
    k('s_cbranch_scc1 L_%s_end' % name)
    if stamp:
        stamp_start(k)
    if npk:
        k('s_cmp_lt_u32 s2, 256')
        k('s_cbranch_scc1 L_%s_main' % name)
        k('s_sub_u32 s3, s2, 256')
        pack_body(k, name, 3, kinds)
        if stamp:
            emit_stamp(k, 100, WS_TS)
        k('s_endpgm')
        k.label('L_%s_main' % name)
        k.vm_issued = k.vm_done = k.lg_issued = k.lg_done = 0
    marks = [] if stamp else None
    VT = k1_main(k, name, marks)
    if stamp:
        emit_stamp(k, VT, WS_TS)
        emit_marks(k, len(marks), VT)
    k.label('L_%s_end' % name)
    k('s_endpgm')
    return k, 256 + npk
```

```python
from common import *


def c_body(k, kind, TT, D, s_mt, s_nt, s_ws=4, s_io=6, marks=None):
    NKS = 18 if kind == 'wo' else 144
    XOFF = WS_OF if kind == 'wo' else WS_HH
    WOFF = WS_WO if kind == 'wo' else WS_WD
    n = (NKS + 3) // 4
    D = min(D, n)
    OWN = TT // 4
    NB64 = TT // 4
    NACC = 6 * TT * 4
    ACC = 0
    B = NACC
    VT = B
    VL = VT + 12
    VLW = VL + 1
    VLR = VLW + (TT - OWN)
    VRA = VLR + 1
    VSA = VRA + OWN
    VRS = VSA + OWN
    VUN = VRS + 2 * OWN
    VUN += (-VUN) % 4
    VW = VUN
    VX = VUN + 1
    VE = VUN + 16 * OWN
    FR = TT + 6
    nA = 256 // (4 * FR)

    def buf(d, i):
        if d < nA:
            return ar((d * FR + i) * 4, 4)
        return vr(VE + ((d - nA) * FR + i) * 4, 4)
    assert VE + max(0, D - nA) * FR * 4 <= 256, 'vgpr overflow'

    k('v_and_b32 v%d, 63, v0' % VT)
    k('v_lshrrev_b32 v%d, 6, v0' % (VT + 1))
    k('v_lshlrev_b32 v%d, 4, v%d' % (VL, VT))
    k('v_readfirstlane_b32 s30, v%d' % (VT + 1))
    for sl in range(TT):
        if OWN == 1:
            k('v_add_u32 v%d, %d, v%d' % (VT + 2, sl, VT + 1))
        else:
            k('v_lshl_add_u32 v%d, v%d, 1, %d' % (VT + 2, VT + 1, sl))
        k('v_and_b32 v%d, 3, v%d' % (VT + 3, VT + 2))
        k('v_lshlrev_b32 v%d, 10, v%d' % (VT + 3, VT + 3))
        k('v_lshl_add_u32 v%d, v%d, 12, v%d' % (VT + 3, VT + 1, VT + 3))
        if NB64 == 2:
            k('v_bfe_u32 v%d, v%d, 2, 1' % (VT + 2, VT + 2))
            k('v_mul_u32_u24 v%d, %d, v%d' % (VT + 2, NKS * 4096, VT + 2))
            k('v_add_u32 v%d, v%d, v%d' % (VT + 3, VT + 3, VT + 2))
        k('v_add_u32 v%d, v%d, v%d' % (VX + sl, VT + 3, VL))
    k('v_mul_u32_u24 v%d, 6144, v%d' % (VT + 2, VT + 1))
    k('v_add_u32 v%d, v%d, v%d' % (VW, VT + 2, VL))
    k('s_waitcnt lgkmcnt(0)')
    k('s_mul_i32 s31, s%d, %d' % (s_mt, NB64 * NKS * 4096))
    k('s_add_u32 s31, s31, %d' % XOFF)
    k.srd(8, s_ws, s_ws + 1, NB64 * NKS * 4096, 's31')
    k('s_mul_i32 s31, s%d, %d' % (s_nt, NKS * 6144))
    k('s_add_u32 s31, s31, %d' % WOFF)
    k.srd(12, s_ws, s_ws + 1, NKS * 6144, 's31')

    last_load = {}

    def mark():
        if marks is not None:
            k('s_memtime s[%d:%d]' % (80 + 2 * len(marks), 81 + 2 * len(marks)))
            marks.append(1)
    mark()

    def loads_for(stage):
        d = stage % D
        out = [('s', 's_mov_b32 s40, %d' % (stage * 16384)),
               ('s', 's_mov_b32 s41, %d' % (stage * 4 * 6144)),
               ('s', 's_mov_b32 s42, %d' % (stage * 4 * 6144 + 4096))]
        xs = [('v', 'buffer_load_dwordx4 %s, v%d, s[8:11], s40 offen' % (buf(d, sl), VX + sl)) for sl in range(TT)]
        ws = [('v', 'buffer_load_dwordx4 %s, v%d, s[12:15], %s offen offset:%d' % (buf(d, TT + t), VW, 's41' if t < 4 else 's42', (t & 3) * 1024)) for t in range(6)]
        out += xs + ws
        return [(a, b, stage) for a, b in out]

    def issue(item):
        kd, txt, stage = item
        if kd == 's':
            k(txt)
        else:
            last_load[stage] = k.vm(txt)

    PRE = min(D, 2)
    for st in range(PRE):
        for it in loads_for(st):
            issue(it)
    pend_pre = []
    for st in range(PRE, D):
        pend_pre += loads_for(st)
    k('v_lshrrev_b32 v%d, 4, v%d' % (VT + 3, VT))
    k('v_and_b32 v%d, 15, v%d' % (VT + 5, VT))
    k('s_mul_i32 s32, s%d, %d' % (s_mt, 16 * TT))
    k('s_mul_i32 s33, s30, %d' % (16 * OWN))
    k('s_add_u32 s32, s32, s33')
    k('s_mul_i32 s33, s%d, 192' % s_nt)
    for o in range(OWN):
        k('v_add_u32 v%d, s32, v%d' % (VT + 6, VT + 5))
        if o:
            k('v_add_u32 v%d, %d, v%d' % (VT + 6, 16 * o, VT + 6))
        k('v_mul_u32_u24 v%d, 1152, v%d' % (VT + 7, VT + 6))
        k('v_add_u32 v%d, s33, v%d' % (VT + 7, VT + 7))
        k('v_lshl_add_u32 v%d, v%d, 4, v%d' % (VRA + o, VT + 3, VT + 7))
        k('v_lshlrev_b32 v%d, 6, v%d' % (VSA + o, VT + 6))
    k('s_lshr_b32 s34, s32, 4')
    k('s_mul_i32 s35, s%d, 3' % s_nt)
    for o in range(OWN):
        k('s_add_u32 s36, s34, %d' % o)
        k('s_lshr_b32 s37, s36, 2')
        k('s_mul_i32 s37, s37, 18')
        k('s_add_u32 s37, s37, s35')
        k('s_lshl_b32 s37, s37, 12')
        k('s_and_b32 s36, s36, 3')
        k('s_lshl_b32 s36, s36, 10')
        k('s_add_u32 s%d, s37, s36' % (44 + o))
    k.srd(24, s_ws, s_ws + 1, S * 64, str(WS_ST))
    if kind == 'wo':
        k.srd(16, s_io, s_io + 1, S * D_BYTES)
        k.srd(20, s_ws, s_ws + 1, S * D_BYTES, str(WS_HF))
    else:
        k.srd(16, s_ws, s_ws + 1, S * D_BYTES, str(WS_HF))
        k.srd(20, s_io, s_io + 1, S * D_BYTES)
    for sl in range(OWN, TT):
        si, o = sl // OWN - 1, sl % OWN
        k('v_add_u32 v%d, %d, v%d' % (VT + 8, sl // OWN, VT + 1))
        k('v_and_b32 v%d, 3, v%d' % (VT + 8, VT + 8))
        k('v_mul_u32_u24 v%d, %d, v%d' % (VT + 8, 3 * OWN * 6144, VT + 8))
        k('v_add_u32 v%d, %d, v%d' % (VT + 8, (si * OWN + o) * 6144, VT + 8))
        k('v_add_u32 v%d, v%d, v%d' % (VLW + sl - OWN, VT + 8, VL))
    k('v_mul_u32_u24 v%d, %d, v%d' % (VT + 8, 3 * OWN * 6144, VT + 1))
    k('v_add_u32 v%d, v%d, v%d' % (VLR, VT + 8, VL))
    while pend_pre:
        issue(pend_pre.pop(0))

    def acc(t, sl):
        return ACC + (t * TT + sl) * 4

    for i in range(n):
        d = i % D
        pend = loads_for(i - 1 + D) if (i >= 1 and i - 1 + D < n) else []
        if i == 0:
            mark()
        k.wait(vm=last_load[i])
        if i in (0, 1, n - 1):
            mark()
        m = 0
        for t in range(6):
            for sl in range(TT):
                c = '0' if i == 0 else vr(acc(t, sl), 4)
                k('v_mfma_f32_16x16x32_bf16 %s, %s, %s, %s' % (vr(acc(t, sl), 4), buf(d, TT + t), buf(d, sl), c))
                m += 1
                if pend:
                    issue(pend.pop(0))
        while pend:
            issue(pend.pop(0))
    VRES = VUN
    VST = VUN + 12 * OWN
    if TT == 8:
        VRD = acc(0, OWN)
        VO = acc(1, OWN)
        VU = VO + 12
    else:
        VRD = VE
        VO = VRD + 24
        VU = VO + 12
        assert D <= nA
    assert VU + 8 <= 256 and VE <= 256
    res = {}
    for o in range(OWN):
        for p in range(3):
            if kind == 'wo':
                res[o] = k.vm('buffer_load_dwordx4 %s, v%d, s[16:19], 0 offen offset:%d' % (vr(VRES + 12 * o + 4 * p, 4), VRA + o, 64 * p))
            else:
                if p:
                    k('s_add_u32 s43, s%d, %d' % (44 + o, 4096 * p))
                res[o] = k.vm('buffer_load_dwordx4 %s, v%d, s[16:19], %s offen' % (vr(VRES + 12 * o + 4 * p, 4), VL, 's43' if p else 's%d' % (44 + o)))
    stl = {}
    if kind == 'down':
        for o in range(OWN):
            k('v_lshl_add_u32 v%d, v%d, 4, v%d' % (VT + 8, VT + 3, VSA + o))
            stl[o] = k.vm('buffer_load_dwordx4 %s, v%d, s[24:27], 0 offen' % (vr(VST + 4 * o, 4), VT + 8))
    mark()
    for sl in range(OWN, TT):
        for t in range(6):
            k.lg('ds_write_b128 v%d, %s offset:%d' % (VLW + sl - OWN, vr(acc(t, sl), 4), t * 1024))
    if kind == 'down':
        for o in range(OWN):
            k.wait(vm=stl[o])
            for t in stats_reduce_list(VST + 4 * o):
                k(t)
            for t in ln_finalize_list(VST + 4 * o, VST + 4 * o + 1, VT + 8, VRS + OWN + o, VRS + o):
                k(t)
    k.wait_all(vm=False)
    mark()
    k('s_barrier')
    mark()
    for o in range(OWN):
        for si in range(3):
            rd = []
            for t in range(6):
                rd.append(k.lg('ds_read_b128 %s, v%d offset:%d' % (vr(VRD + 4 * t, 4), VLR, (si * OWN + o) * 6144 + t * 1024)))
            for t in range(6):
                k.wait(lg=rd[t])
                for r in range(4):
                    k('v_add_f32 v%d, v%d, v%d' % (acc(t, o) + r, acc(t, o) + r, VRD + 4 * t + r))
        vals = []
        for t in range(6):
            vals += [acc(t, o) + r for r in range(4)]
        if kind == 'down':
            for v in vals:
                k('v_mul_f32 v%d, v%d, v%d' % (v, VRS + o, v))
        mark()
        k.wait(vm=res[o])
        mark()
        for q in range(12):
            a, b = vals[2 * q], vals[2 * q + 1]
            rr = VRES + 12 * o + q
            k('v_cvt_pk_bf16_f32 v%d, v%d, v%d' % (VU, a, b))
            k('v_lshlrev_b32 v%d, 16, v%d' % (VU + 1, rr))
            k('v_and_b32 v%d, 0xffff0000, v%d' % (VU + 2, rr))
            k('v_lshlrev_b32 v%d, 16, v%d' % (a, VU))
            k('v_and_b32 v%d, 0xffff0000, v%d' % (b, VU))
            k('v_add_f32 v%d, v%d, v%d' % (a, a, VU + 1))
            k('v_add_f32 v%d, v%d, v%d' % (b, b, VU + 2))
            k('v_cvt_pk_bf16_f32 v%d, v%d, v%d' % (VO + q, a, b))
            if q % 4 == 3:
                p = q // 4
                if kind == 'wo':
                    if p:
                        k('s_add_u32 s43, s%d, %d' % (44 + o, 4096 * p))
                    k.vm('buffer_store_dwordx4 %s, v%d, s[20:23], %s offen' % (vr(VO + 4 * p, 4), VL, 's43' if p else 's%d' % (44 + o)))
                else:
                    k.vm('buffer_store_dwordx4 %s, v%d, s[20:23], 0 offen offset:%d' % (vr(VO + 4 * p, 4), VRA + o, 64 * p))
        if kind == 'wo':
            VS0, VS1, VS2, VS3 = VU, VU + 1, VU + 2, VU + 3
            k('v_mov_b32 v%d, 0x3f803f80' % (VU + 4))
            k('v_mov_b32 v%d, 0' % VS0)
            k('v_mov_b32 v%d, 0' % VS1)
            for q in range(12):
                k('v_dot2_f32_bf16 v%d, v%d, v%d, v%d' % (VS0, VO + q, VU + 4, VS0))
                k('v_dot2_f32_bf16 v%d, v%d, v%d, v%d' % (VS1, VO + q, VO + q, VS1))
            for t in group_reduce_list(VS0, VS1, VS2, VS3):
                k(t)
            k('v_add_u32 v%d, 5, v%d' % (VS2, VT + 3))
            k('v_mov_b32 v%d, s%d' % (VS3, s_nt))
            k('v_add_u32 v%d, 1, v%d' % (VU + 4, VT + 3))
            k('v_and_b32 v%d, 2, v%d' % (VU + 4, VU + 4))
            k('v_cmp_ne_u32 vcc, 0, v%d' % (VU + 4))
            k('v_cndmask_b32 v%d, v%d, v%d, vcc' % (VS2, VS3, VS2))
            k('v_cndmask_b32 v%d, v%d, 0, vcc' % (VS0, VS0))
            k('v_cndmask_b32 v%d, v%d, 0, vcc' % (VS1, VS1))
            k('v_lshl_add_u32 v%d, v%d, 3, v%d' % (VS2, VS2, VSA + o))
            k.vm('buffer_store_dwordx2 %s, v%d, s[24:27], 0 offen' % (vr(VS0, 2), VS2))
    return VT


def gen_c(name, kind, TT=4, D=5, stamp=False):
    k = TK(name)
    nwg = (128 // TT) * 6
    k('s_cmp_ge_u32 s2, %d' % nwg)
    k('s_cbranch_scc1 L_%s_end' % name)
    k('s_load_dwordx2 s[4:5], s[0:1], 72')
    k('s_load_dwordx2 s[6:7], s[0:1], %d' % (0 if kind == 'wo' else 56))
    if stamp:
        stamp_start(k)
    per = (128 // TT) // 8
    lg = {4: 2, 2: 1}[per]
    k('s_and_b32 s28, s2, 7')
    k('s_lshl_b32 s28, s28, %d' % lg)
    k('s_bfe_u32 s29, s2, %s' % hex((lg << 16) | 3))
    k('s_add_u32 s28, s28, s29')
    k('s_lshr_b32 s29, s2, %d' % (3 + lg))
    marks = [] if (stamp and kind == 'wo') else None
    VT = c_body(k, kind, TT, D, 28, 29, marks=marks)
    if stamp:
        emit_stamp(k, VT, WS_TS + (0x10000 if kind == 'wo' else 0x30000))
        if marks is not None:
            emit_marks(k, len(marks), VT)
    k.label('L_%s_end' % name)
    k('s_endpgm')
    return k, nwg
```

```python
from common import *


P_VH = 0
P_ACC = 32
P_WB = 160
P_CS = 184
P_ST = 192
P_OUT = 200
P_SR = 216
P_VL = 232
P_VL2 = 233
P_VD = 234
P_VC = 235
P_VT = 236
P_LDS_CS = 0
P_LDS_RING = 4096


def cost(txt):
    mn = txt.split()[0]
    return 2 if mn in TRANS else 1


def p_body(k, NU, G1=3, Q1=3, Q=6, RQ=30, budget=2, publish=None, marks=False, LA1=10, LA2=40, dbg=''):
    NH = 2 * NU

    def hreg(ks, tt):
        q = ks * 4 + tt
        return ar(4 * q, 4) if q < 64 else vr(P_VH + 4 * (q - 64), 4)

    def accr(s, gu, tt):
        return P_ACC + 32 * s + (gu * 4 + tt) * 4

    pairs = []
    for ks in range(18):
        for hu in range(G1):
            pairs.append((hu, ks))
    for hu in range(G1, NH):
        for ks in range(18):
            pairs.append((hu, ks))
    NP = len(pairs)
    quads, qidx = [], {}
    for (hu, ks) in pairs:
        key = (hu, ks >> 1)
        if key not in qidx:
            qidx[key] = len(quads)
            quads.append(key)
    slot_of_quad, slots = [], []
    q = 0
    n1 = 9 * G1
    while q < len(quads):
        sz = Q1 if q < n1 else Q
        if q < n1:
            sz = min(sz, n1 - q)
        sz = min(sz, len(quads) - q)
        slots.append(list(range(q, q + sz)))
        slot_of_quad += [len(slots) - 1] * sz
        q += sz
    nslots = len(slots)
    slot_of_pair = [slot_of_quad[qidx[(hu, ks >> 1)]] for (hu, ks) in pairs]
    first_pair, last_pair = {}, {}
    for p, s in enumerate(slot_of_pair):
        first_pair.setdefault(s, p)
        last_pair[s] = p
    for s in range(nslots - 1):
        assert last_pair[s] < first_pair[s + 1]

    def lds_addr(hu, ks, gu):
        return P_LDS_RING + (qidx[(hu, ks >> 1)] % RQ) * 4096 + (ks & 1) * 2048 + gu * 1024

    ids = {}
    state = dict(pair=-2, mfma=0, free_quads=RQ, mk=0)

    mem = []
    for qi, (hu, k2) in enumerate(quads):
        s = slot_of_quad[qi]
        needp = first_pair[s] - 2
        grp = [('ringgate', qi),
               ('s', 's_add_u32 m0, s31, %d' % (P_LDS_RING + (qi % RQ) * 4096)),
               ('s', 's_mov_b32 s40, %d' % (hu * 36864 + k2 * 4096)),
               ('vm', 'buffer_load_dwordx4 v%d, s[12:15], s40 offen lds' % P_VD, ('dma', qi))]
        mem.append((needp, 0, qi, grp, LA1 if qi < n1 else LA2))
    for ks in range(18):
        grp = [('s', 's_mov_b32 s41, %d' % (ks * 4096))]
        for tt in range(4):
            grp.append(('vm', 'buffer_load_dwordx4 %s, v%d, s[8:11], s41 offen offset:%d' % (hreg(ks, tt), P_VL, tt * 1024), ('h', ks, tt)))
        mem.append((ks * G1, 1, ks, grp, LA1))
    mem.append((first_pair[2] - 3, 0, -1, [('s', 's_add_u32 m0, s31, %d' % P_LDS_CS), ('s', 's_nop 0'),
                ('vm', 'buffer_load_dwordx4 v%d, s[20:23], 0 offen lds' % P_VD, ('cs',))], LA1))
    mem.sort(key=lambda x: (x[0], x[1], x[2]))
    q_mem = []
    for needp, _, _, grp, la in mem:
        q_mem.append(('gate_pair', needp - la))
        q_mem += grp

    def emit(it):
        kd = it[0]
        if kd in ('s', 'v'):
            k(it[1])
        elif kd == 'vm':
            ids[it[2]] = k.vm(it[1])
        elif kd == 'lg':
            ids[it[2]] = k.lg(it[1])
        elif kd == 'waitvm':
            k.wait(vm=ids[it[1]])
        elif kd == 'waitlg':
            k.wait(lg=ids[it[1]])
        elif kd == 'call':
            it[1]()
        else:
            raise ValueError(kd)

    q_epi = []
    q_epi.append(('gate_pair', 6 * G1))
    for tt in range(4):
        q_epi.append(('vm', 'buffer_load_dwordx4 %s, v%d, s[24:27], 0 offen offset:%d' % (vr(P_SR + 4 * tt, 4), P_VT, tt * 1024), ('st', tt)))
    q_epi.append(('gate_pair', 11 * G1))
    q_epi.append(('waitvm', ('st', 3)))
    for tt in range(4):
        for t in stats_reduce_list(P_SR + 4 * tt):
            q_epi.append(('v', t))
    for tt in range(4):
        for t in ln_finalize_list(P_SR + 4 * tt, P_SR + 4 * tt + 1, P_VT + 1 + (tt & 1), P_ST + tt, P_ST + 4 + tt, mul=-LOG2E):
            q_epi.append(('v', t))

    set_of = {}
    set_free = {0: True, 1: True, 2: True, 3: True}

    def epi_task(hu, gate):
        s = set_of[hu]
        half = hu & 1
        L = []
        for gu in range(2):
            L.append(('lg', 'ds_read_b128 %s, v%d offset:%d' % (vr(P_CS + 4 * gu, 4), P_VC, hu * 128 + gu * 64), ('cs', hu, gu)))
        L.append(('gate_mfma', gate))
        L.append(('waitlg', ('cs', hu, 1)))
        for tt in range(4):
            g0, u0 = accr(s, 0, tt), accr(s, 1, tt)
            nm, c = P_ST + tt, P_ST + 4 + tt
            for r in range(4):
                L.append(('v', 'v_fmac_f32 v%d, v%d, v%d' % (g0 + r, nm, P_CS + r)))
            for r in range(4):
                L.append(('v', 'v_mul_f32 v%d, v%d, v%d' % (g0 + r, c, g0 + r)))
            for r in range(4):
                L.append(('v', 'v_exp_f32 v%d, v%d' % (g0 + r, g0 + r)))
            for r in range(4):
                L.append(('v', 'v_fmac_f32 v%d, v%d, v%d' % (u0 + r, nm, P_CS + 4 + r)))
            for r in range(4):
                L.append(('v', 'v_add_f32 v%d, 1.0, v%d' % (g0 + r, g0 + r)))
            for r in range(4):
                L.append(('v', 'v_rcp_f32 v%d, v%d' % (g0 + r, g0 + r)))
            for r in range(4):
                L.append(('v', 'v_mul_f32 v%d, v%d, v%d' % (u0 + r, u0 + r, g0 + r)))
            o = P_OUT + 4 * tt + 2 * half
            L.append(('v', 'v_cvt_pk_bf16_f32 v%d, v%d, v%d' % (o, u0, u0 + 1)))
            L.append(('v', 'v_cvt_pk_bf16_f32 v%d, v%d, v%d' % (o + 1, u0 + 2, u0 + 3)))
            if half == 1:
                if tt == 0:
                    L.append(('s', 's_mov_b32 s42, %d' % ((hu >> 1) * 4096)))
                L.append(('vm', 'buffer_store_dwordx4 %s, v%d, s[16:19], s42 offen offset:%d%s' % (vr(P_OUT + 4 * tt, 4), P_VL, tt * 1024, ' sc1' if publish else ''), ('out', hu >> 1, tt)))

        if 'noepi' in dbg:
            L = [x for x in L if x[0] != 'v']
        if 'notrans' in dbg:
            L = [(x[0], x[1].replace('v_exp_f32', 'v_mov_b32').replace('v_rcp_f32', 'v_mov_b32')) if x[0] == 'v' else x for x in L]
        if 'nostore' in dbg:
            L = [x for x in L if x[0] != 'vm']

        def rel():
            set_free[s] = True
        L.append(('call', rel))
        return L

    def read_txt(p, gu):
        hu, ks = pairs[p]
        wb = P_WB + 8 * (p % 3)
        a = lds_addr(hu, ks, gu)
        base = P_VL if a < 65536 else P_VL2
        return 'ds_read_b128 %s, v%d offset:%d' % (vr(wb + 4 * gu, 4), base, a & 0xffff)

    def force_mem(key):
        while key not in ids:
            it = q_mem.pop(0)
            if it[0] == 'gate_pair':
                continue
            if it[0] == 'ringgate':
                assert it[1] < state['free_quads'], 'ring deadlock'
                continue
            emit(it)

    def barrier_for_slot(s):
        need = [('dma', qi) for qi in slots[s]]
        if s == 2:
            need.append(('cs',))
        for key in need:
            force_mem(key)
        n0 = len(k.ins)
        k.wait(vm=max(ids[key] for key in need))
        if 'nobar' not in dbg or s < 12:
            k('s_barrier')
        if s >= 2:
            state['free_quads'] = slots[s - 2][-1] + 1 + RQ
        return len(k.ins) - n0

    def pop_fill(q, bud):
        while q and bud > 0:
            it = q[0]
            if it[0] == 'gate_pair':
                if state['pair'] >= it[1]:
                    q.pop(0)
                    continue
                break
            if it[0] == 'gate_mfma':
                if state['mfma'] >= it[1]:
                    q.pop(0)
                    continue
                break
            if it[0] == 'ringgate':
                if it[1] < state['free_quads']:
                    q.pop(0)
                    continue
                break
            if it[0] == 'call':
                q.pop(0)
                emit(it)
                continue
            c = cost(it[1]) if it[0] in ('v', 's') else 1
            if c > bud:
                break
            q.pop(0)
            n0 = len(k.ins)
            emit(it)
            if len(k.ins) > n0:
                bud -= c
        return bud

    pop_fill(q_mem, 1000)
    barrier_for_slot(0)
    for p in (0, 1):
        assert slot_of_pair[p] == 0
        for gu in range(2):
            ids[('rd', p, gu)] = k.lg(read_txt(p, gu))
    for p in range(NP):
        hu, ks = pairs[p]
        state['pair'] = p
        if ks == 0:
            while not any(set_free.values()):
                it = q_epi.pop(0)
                if it[0] in ('gate_pair', 'gate_mfma'):
                    continue
                emit(it)
            s = min(x for x in set_free if set_free[x])
            set_free[s] = False
            set_of[hu] = s
        s = set_of[hu]
        wb = P_WB + 8 * (p % 3)
        duties = []
        if p + 2 < NP:
            s2 = slot_of_pair[p + 2]
            if first_pair[s2] == p + 2:
                duties.append(('bar', s2))
            duties.append(('rd', p + 2, 0))
            duties.append(('rd', p + 2, 1))
        k.wait(lg=ids[('rd', p, 1)])
        if marks and (p in (1, 6 * G1, 12 * G1) or (p >= 18 * G1 and ks == 0)):
            k('s_memtime s[%d:%d]' % (80 + 2 * state['mk'], 81 + 2 * state['mk']))
            state['mk'] += 1
        for m in range(8):
            gu, tt = m >> 2, m & 3
            if hu == 0 and gu == 0 and tt in (0, 2):
                force_mem(('h', ks, tt + 1))
                k.wait(vm=ids[('h', ks, tt + 1)])
            a = accr(s, gu, tt)
            c = '0' if ks == 0 else vr(a, 4)
            k('v_mfma_f32_16x16x32_bf16 %s, %s, %s, %s' % (vr(a, 4), vr(wb + 4 * gu, 4), hreg(ks, tt), c))
            state['mfma'] += 1
            bud = budget
            if m == 7:
                bud -= 1
            if hu == 0 and m == 1:
                bud -= 1
            if duties:
                d = duties.pop(0)
                if d[0] == 'bar':
                    bud -= barrier_for_slot(d[1])
                else:
                    ids[d] = k.lg(read_txt(d[1], d[2]))
                    bud -= 1
            bud = pop_fill(q_mem, bud)
            bud = pop_fill(q_epi, bud)
        if ks == 17:
            q_epi.extend(epi_task(hu, state['mfma'] + 4))
    if marks:
        k('s_memtime s[%d:%d]' % (80 + 2 * state['mk'], 81 + 2 * state['mk']))
    state['mfma'] += 100
    state['pair'] += 100
    while q_mem or q_epi:
        pop_fill(q_mem, 1000)
        pop_fill(q_epi, 1000)


def p_setup(k, s_tb, s_u0, nu_max):
    k('''
    v_and_b32 v%d, 63, v0
    v_lshrrev_b32 v%d, 6, v0
    ''' % (P_VT + 2, P_VT + 3))
    k('v_lshlrev_b32 v%d, 4, v%d' % (P_VL, P_VT + 2))
    k('v_readfirstlane_b32 s30, v%d' % (P_VT + 3))
    k('v_add_u32 v%d, 0x10000, v%d' % (P_VL2, P_VL))
    k('v_lshl_add_u32 v%d, v%d, 10, v%d' % (P_VD, P_VT + 3, P_VL))
    k('v_lshrrev_b32 v%d, 4, v%d' % (P_VT + 4, P_VT + 2))
    k('v_lshlrev_b32 v%d, 4, v%d' % (P_VC, P_VT + 4))
    k('s_lshl_b32 s31, s30, 10')
    k('s_lshl_b32 s32, s%d, 2' % s_tb)
    k('s_add_u32 s32, s32, s30')
    k('v_and_b32 v%d, 15, v%d' % (P_VT + 5, P_VT + 2))
    k('v_lshlrev_b32 v%d, 6, v%d' % (P_VT + 5, P_VT + 5))
    k('v_lshl_add_u32 v%d, v%d, 4, v%d' % (P_VT + 5, P_VT + 4, P_VT + 5))
    k('s_lshl_b32 s33, s32, 12')
    k('v_add_u32 v%d, s33, v%d' % (P_VT, P_VT + 5))
    k('s_waitcnt lgkmcnt(0)')
    k('s_mul_i32 s33, s32, 73728')
    k('s_add_u32 s33, s33, %d' % WS_HF)
    k.srd(8, 4, 5, 73728, 's33')
    k('s_mul_i32 s33, s%d, 73728' % s_u0)
    k('s_add_u32 s33, s33, %d' % WS_W1)
    k.srd(12, 4, 5, nu_max * 73728, 's33')
    k('s_mul_i32 s33, s32, %d' % (144 * 4096))
    k('s_lshl_b32 s34, s%d, 12' % s_u0)
    k('s_add_u32 s33, s33, s34')
    k('s_add_u32 s33, s33, %d' % WS_HH)
    k.srd(16, 4, 5, nu_max * 4096, 's33')
    k('s_lshl_b32 s33, s%d, 8' % s_u0)
    k('s_add_u32 s33, s33, %d' % WS_CS)
    k.srd(20, 4, 5, 4096, 's33')
    k.srd(24, 4, 5, S * 64, str(WS_ST))


def gen_k3(name, stamp=False, **kw):
    k = TK(name)
    L = name
    k('s_cmp_ge_u32 s2, 256')
    k('s_cbranch_scc1 L_%s_end' % L)
    k('s_load_dwordx2 s[4:5], s[0:1], 72')
    if stamp:
        stamp_start(k)
    k('''
    s_and_b32 s28, s2, 7
    s_lshl_b32 s28, s28, 2
    s_bfe_u32 s29, s2, 0x20003
    s_add_u32 s28, s28, s29
    s_lshr_b32 s29, s2, 5
    ''')
    k('''
    s_lshr_b32 s35, s28, 1
    s_mul_i32 s35, s35, 9
    s_and_b32 s36, s28, 1
    s_mul_i32 s37, s36, 5
    s_add_u32 s35, s35, s37
    ''')
    p_setup(k, 29, 35, 5)
    k('s_cmp_eq_u32 s36, 1')
    k('s_cbranch_scc1 L_%s_odd' % L)
    import copy
    st = (k.vm_issued, k.vm_done, k.lg_issued, k.lg_done)
    p_body(k, 5, **kw)
    k('s_branch L_%s_fin' % L)
    k.label('L_%s_odd' % L)
    k.vm_issued, k.vm_done, k.lg_issued, k.lg_done = st
    p_body(k, 4, **kw)
    k.label('L_%s_fin' % L)
    if stamp:
        k('v_and_b32 v%d, 63, v0' % 240) if False else None
        k('v_lshrrev_b32 v240, 4, v%d' % P_VL)
        emit_stamp(k, 240, WS_TS + 0x20000)
        if kw.get('marks'):
            emit_marks(k, 11, 240)
    k.label('L_%s_end' % L)
    k('s_endpgm')
    return k
```

```python
from common import *

N_PACK_W1 = 144
N_PACK_WO = 9
N_PACK_WD = 72


def pack_body(k, L, s_t, kinds=('w1', 'wo', 'wd')):
    k('s_load_dwordx2 s[4:5], s[0:1], 72')
    k('s_load_dwordx2 s[6:7], s[0:1], 16')
    k('s_load_dwordx4 s[8:11], s[0:1], 32')
    k('s_load_dwordx2 s[12:13], s[0:1], 48')
    k('v_and_b32 v100, 63, v0')
    k('v_lshrrev_b32 v101, 6, v0')
    k('v_readfirstlane_b32 s30, v101')
    k('v_and_b32 v102, 31, v100')
    k('v_lshlrev_b32 v116, 3, v0')
    k('v_lshrrev_b32 v103, 5, v100')
    k('s_waitcnt lgkmcnt(0)')
    base = 0
    for kind in kinds:
        cnt = {'w1': N_PACK_W1, 'wo': N_PACK_WO, 'wd': N_PACK_WD}[kind]
        nxt = 'L_%s_pk_not_%s' % (L, kind)
        if kind != kinds[-1]:
            k('s_cmp_ge_u32 s%d, %d' % (s_t, base + cnt))
            k('s_cbranch_scc1 %s' % nxt)
        k('s_sub_u32 s44, s%d, %d' % (s_t, base))
        if kind == 'w1':
            k('s_and_b32 s45, s44, 1')
            k('s_lshr_b32 s46, s44, 1')
            k('s_cmp_eq_u32 s45, 0')
            k('s_cselect_b32 s16, s8, s10')
            k('s_cselect_b32 s17, s9, s11')
            k('s_mov_b32 s18, %d' % (D * F * 2))
            k('s_mov_b32 s19, 0x20000')
            k('s_mov_b32 s33, 9216')
            k('s_lshl_b32 s34, s46, 7')
            k('s_mul_i32 s35, s46, %d' % (2 * 73728))
            k('s_lshl_b32 s47, s45, 10')
            k('s_add_u32 s35, s35, s47')
            k('s_add_u32 s35, s35, %d' % WS_W1)
            k('s_mov_b32 s36, 73728')
            k('s_mov_b32 s37, 36864')
            k('s_mov_b32 s38, 2048')
            k('s_mov_b32 s39, 1')
            k('s_lshl_b32 s43, s46, 9')
            k('s_lshl_b32 s47, s45, 6')
            k('s_add_u32 s43, s43, s47')
            k('s_add_u32 s43, s43, %d' % WS_CS)
        else:
            NKS = 18 if kind == 'wo' else 144
            if kind == 'wo':
                k('s_mov_b32 s16, s6')
                k('s_mov_b32 s17, s7')
                k('s_mov_b32 s18, %d' % (D * D * 2))
                k('s_mov_b32 s45, 0')
                k('s_mov_b32 s46, s44')
            else:
                k('s_mov_b32 s16, s12')
                k('s_mov_b32 s17, s13')
                k('s_mov_b32 s18, %d' % (F * D * 2))
                k('s_and_b32 s45, s44, 7')
                k('s_lshr_b32 s46, s44, 3')
            k('s_mov_b32 s19, 0x20000')
            k('s_mov_b32 s33, 1152')
            k('s_mul_i32 s34, s45, %d' % (576 * 1152))
            k('s_lshl_b32 s47, s46, 7')
            k('s_add_u32 s34, s34, s47')
            k('s_lshl_b32 s47, s46, 1')
            k('s_mul_i32 s48, s47, 43')
            k('s_lshr_b32 s48, s48, 7')
            k('s_mul_i32 s49, s48, 3')
            k('s_sub_u32 s49, s47, s49')
            k('s_mul_i32 s35, s48, %d' % (NKS * 6144))
            k('s_lshl_b32 s47, s49, 11')
            k('s_add_u32 s35, s35, s47')
            k('s_mul_i32 s47, s45, %d' % (18 * 6144))
            k('s_add_u32 s35, s35, s47')
            k('s_add_u32 s35, s35, %d' % (WS_WO if kind == 'wo' else WS_WD))
            k('s_cmp_eq_u32 s49, 2')
            k('s_cselect_b32 s36, %d, 2048' % (NKS * 6144 - 4096)) if False else None
            k('s_mov_b32 s36, 2048')
            k('s_cmov_b32 s36, %d' % (NKS * 6144 - 4096))
            k('s_mov_b32 s37, 1024')
            k('s_mov_b32 s38, 6144')
            k('s_mov_b32 s39, 0')
            k('s_mov_b32 s43, 0')
        if kind != kinds[-1]:
            k('s_branch L_%s_pk_go' % L)
            k.label(nxt)
        base += cnt
    k.label('L_%s_pk_go' % L)
    k.srd(20, 4, 5, 64 * MB)
    k('v_lshlrev_b32 v104, 3, v103')
    k('v_mul_lo_u32 v104, v104, s33')
    k('v_lshl_add_u32 v104, v102, 2, v104')
    k('v_lshrrev_b32 v105, 4, v102')
    k('v_mul_lo_u32 v105, v105, s36')
    k('v_bfe_u32 v106, v102, 1, 1')
    k('v_mul_lo_u32 v107, v106, s37')
    k('v_add_u32 v105, v105, v107')
    k('v_bfe_u32 v107, v102, 2, 2')
    k('v_lshlrev_b32 v107, 2, v107')
    k('v_and_b32 v108, 1, v102')
    k('v_lshl_add_u32 v107, v108, 1, v107')
    k('v_lshl_add_u32 v105, v107, 4, v105')
    k('v_lshl_add_u32 v105, v103, 8, v105')
    k('v_lshrrev_b32 v109, 4, v102')
    k('v_lshlrev_b32 v109, 8, v109')
    k('v_lshl_add_u32 v109, v106, 7, v109')
    k('v_lshl_add_u32 v109, v107, 2, v109')
    k('s_mul_i32 s40, s30, 144')
    k('s_mul_i32 s40, s40, s33')
    k('s_add_u32 s40, s40, s34')
    k('s_lshl_b32 s41, s33, 3')
    k('s_mov_b32 s50, 0x05040100')
    k('s_mov_b32 s51, 0x07060302')
    k('v_mov_b32 v110, 0x3f803f80')
    k('v_mov_b32 v112, 0')
    k('v_mov_b32 v113, 0')
    ids = {}

    def loads(it):
        for r in range(8):
            ids[(it, r)] = k.vm('buffer_load_dword v%d, v104, s[16:19], s40 offen' % (it * 8 + r))
            k('s_add_u32 s40, s40, s33')
        k('s_add_u32 s40, s40, s41')
    for it in range(7):
        loads(it)
    k('s_mul_i32 s52, s30, 18')
    for it in range(9):
        k.wait(vm=ids[(it, 7)])
        o = 72 + (it & 1) * 8
        b = it * 8
        for q in range(4):
            k('v_perm_b32 v%d, v%d, v%d, s50' % (o + q, b + 2 * q + 1, b + 2 * q))
            k('v_perm_b32 v%d, v%d, v%d, s51' % (o + 4 + q, b + 2 * q + 1, b + 2 * q))
        k('s_add_u32 s53, s52, %d' % (2 * it))
        k('s_lshr_b32 s54, s53, 2')
        k('s_mul_i32 s54, s54, s38')
        k('s_and_b32 s53, s53, 3')
        k('s_lshl_b32 s53, s53, 8')
        k('s_add_u32 s54, s54, s53')
        k('s_add_u32 s54, s54, s35')
        k.vm('buffer_store_dwordx4 %s, v105, s[20:23], s54 offen' % vr(o, 4))
        k.vm('buffer_store_dwordx4 %s, v105, s[20:23], s54 offen offset:16' % vr(o + 4, 4))
        for q in range(4):
            k('v_dot2_f32_bf16 v112, v%d, v110, v112' % (o + q))
            k('v_dot2_f32_bf16 v113, v%d, v110, v113' % (o + 4 + q))
        if it + 7 < 9:
            loads(it + 7)
    k('s_cmp_eq_u32 s39, 0')
    k('s_cbranch_scc1 L_%s_pk_done' % L)
    k('v_mov_b32 v114, v112')
    k('v_mov_b32 v115, v113')
    k('v_permlane32_swap_b32 v112, v114')
    k('v_permlane32_swap_b32 v113, v115')
    k('v_add_f32 v112, v112, v114')
    k('v_add_f32 v113, v113, v115')
    k('ds_write_b64 v116, v[112:113]')
    k('s_waitcnt lgkmcnt(0)')
    k('s_barrier')
    k('s_cmp_lg_u32 s30, 0')
    k('s_cbranch_scc1 L_%s_pk_done' % L)
    k('ds_read_b64 v[118:119], v116 offset:512')
    k('ds_read_b64 v[120:121], v116 offset:1024')
    k('ds_read_b64 v[122:123], v116 offset:1536')
    k('s_waitcnt lgkmcnt(0)')
    for a in (118, 120, 122):
        k('v_add_f32 v112, v112, v%d' % a)
        k('v_add_f32 v113, v113, v%d' % (a + 1))
    k('buffer_store_dwordx2 v[112:113], v109, s[20:23], s43 offen')
    k.label('L_%s_pk_done' % L)


def gen_pack(name):
    k = TK(name)
    n = N_PACK_W1 + N_PACK_WO + N_PACK_WD
    k('s_cmp_ge_u32 s2, %d' % n)
    k('s_cbranch_scc1 L_%s_end' % name)
    pack_body(k, name, 2)
    k.label('L_%s_end' % name)
    k('s_endpgm')
    return k, n
```

```python
import numpy as np
S, D, F, H, DH = 2048, 576, 4608, 32, 18
MB = 1 << 20
WS_OF = 0 * MB
WS_HF = 4 * MB
WS_ST = 8 * MB
WS_CS = 9 * MB
WS_FL = 9 * MB + 512 * 1024
WS_WO = 10 * MB
WS_WD = 12 * MB
WS_W1 = 20 * MB
WS_HH = 32 * MB
WS_TS = 64 * MB
D_BYTES = 1152

def xf_pack(X):
    Sx, K = X.shape
    a = X.reshape(Sx // 64, 4, 16, K // 32, 4, 8)
    return np.ascontiguousarray(a.transpose(0, 3, 1, 4, 2, 5))

def xf_unpack(P, K):
    a = P.reshape(-1, K // 32, 4, 4, 16, 8)
    return np.ascontiguousarray(a.transpose(0, 2, 4, 1, 3, 5)).reshape(-1, K)

def f_of(half, i):
    return 8 * (i >> 2) + 4 * half + (i & 3)

def wb_pack(W):
    K = W.shape[0]
    out = np.zeros((6, K // 32, 3, 2, 4, 16, 8), np.uint16)
    Wr = W.reshape(K // 32, 4, 8, 6, 3, 32)
    for half in range(2):
        cols = [f_of(half, i) for i in range(16)]
        blk = Wr[..., cols]
        out[:, :, :, half] = blk.transpose(3, 0, 4, 1, 5, 2)
    return out

def w1_pack(Wg, Wu):
    out = np.zeros((144, 2, 18, 2, 4, 16, 8), np.uint16)
    for gu, W in enumerate((Wg, Wu)):
        Wr = W.reshape(18, 4, 8, 144, 32)
        for half in range(2):
            cols = [f_of(half, i) for i in range(16)]
            blk = Wr[:, :, :, :, cols]
            out[:, half, :, gu] = blk.transpose(3, 0, 1, 4, 2)
    return out

def cs_pack(csg, csu):
    out = np.zeros((144, 2, 2, 16), np.float32)
    for gu, c in enumerate((csg, csu)):
        cr = c.reshape(144, 32)
        for half in range(2):
            out[:, half, gu] = cr[:, [f_of(half, i) for i in range(16)]]
    return out
```

```python
import sys
sys.path.insert(0, 'gen')
from k_1 import *
from k_c import *
from k_p import *
stamp = len(sys.argv) > 2 and sys.argv[2] == 'stamp'
k1, n1 = gen_k1('k1_kernel', ('w1', 'wo', 'wd'), stamp=stamp)
k2, n2 = gen_c('k2_kernel', 'wo', 4, 5, stamp=stamp)
k3 = gen_k3('k3_kernel', stamp=stamp)
k4, n4 = gen_c('k4_kernel', 'down', 4, 5, stamp=stamp)
hdr = ['sequential preLN block: K1 (LN1+QKV+attention, weight repack side jobs), K2 (Wo+residual+stats), K3 (GLU up), K4 (down+residual)']
txt = build_file(hdr, [('k1_kernel', n1, 256, K1_LDS), ('k2_kernel', n2, 256, 73728), ('k3_kernel', 256, 256, 4096 + 30 * 4096), ('k4_kernel', n4, 256, 73728)],
                 [k.text() for k in (k1, k2, k3, k4)])
open(sys.argv[1], 'w').write(txt)
print(len(txt))
```
